```python
import torch

def _softmax(x, axis=-1):
    return torch.softmax(x, dim=axis)
def _gelu(x):
    return torch.nn.functional.gelu(x, approximate="tanh")
def _silu(x):
    return torch.nn.functional.silu(x)
def _sigmoid(x):
    return torch.sigmoid(x)
def _layernorm(x, axis=-1, eps=1e-5):
    m = x.mean(dim=axis, keepdim=True)
    v = x.var(dim=axis, keepdim=True, unbiased=False)
    return (x - m) / torch.sqrt(v + eps)
def _scatter_add(tgt, idx, src, axis=0):
    return tgt.clone().index_add_(axis, idx, src)
def _segment_sum(src, seg, n):
    out = torch.zeros((n,) + src.shape[1:], dtype=src.dtype)
    return out.index_add_(0, seg, src)
def _pad(x, pw):
    flat = tuple(v for pair in reversed(pw) for v in pair)
    return torch.nn.functional.pad(x, flat)

kernel_name = 'standalone__sequential_behavior_din__recsys'

def setup_inputs():

    _w = (lambda a: (lambda t: t.to(torch.bfloat16) if t.is_floating_point() else t)(torch.as_tensor(a)))
    B, L, D = 16384, 20, 64
    H = D
    return {
        "target": _w((lambda *s: torch.randn(*s, dtype=torch.bfloat16) * 1.6)(B, D)),
        "hist": _w((lambda *s: torch.randn(*s, dtype=torch.bfloat16) * 1.6)(B, L, D)),
        "mask": _w((lambda lo, hi, *s: torch.randint(lo, hi, s))(0, 2, B, L).to(float)),
        "w1": _w((lambda *s: torch.randn(*s, dtype=torch.bfloat16) * 1.6)(4 * D, H) * (4 * D) ** -0.5),
        "b1": _w((lambda *s: torch.randn(*s, dtype=torch.bfloat16) * 12.8)(H) * 0.1),
        "w2": _w((lambda *s: torch.randn(*s, dtype=torch.bfloat16) * 0.05)(H, 1) * H ** -0.5),
        "b2": _w((lambda *s: torch.randn(*s, dtype=torch.bfloat16) * 0.2)(1) * 0.1),
    }

def reference(target, hist, mask, w1, b1, w2, b2):
    L = hist.shape[1]
    tgt = (lambda x, n, axis: torch.repeat_interleave(x, n, dim=axis))(target[:, None, :], L, axis=1)
    feat = torch.concatenate([hist, tgt, hist - tgt, hist * tgt], axis=-1)
    h = _sigmoid(feat @ w1 + b1)
    scores = (h @ w2 + b2)[..., 0] * mask
    return torch.einsum('bl,bld->bd', scores, hist)
```

```python
import re

REG = re.compile(r"\b([vas])(?:(\d+)|\[(\d+):(\d+)\])")
TRANS = ("v_exp_f32", "v_rcp_f32", "v_log_f32", "v_rsq_f32", "v_sqrt_f32")


def regs_of(op):
    op = op.strip()
    out = []
    for m in REG.finditer(op):
        k = m.group(1)
        if m.group(2) is not None:
            out.append((k, int(m.group(2))))
        else:
            out += [(k, i) for i in range(int(m.group(3)), int(m.group(4)) + 1)]
    for name in ("vcc", "exec", "m0"):
        if re.search(r"\b%s(_lo|_hi)?\b" % name, op):
            out.append((name, 0))
    return out


class Ins:
    def __init__(self, text):
        self.text = text
        t = text.split(";")[0].strip()
        self.label = t.endswith(":")
        self.pre = []
        self.nops = 0
        self.lgkm = None
        if self.label or not t or t.startswith("."):
            self.op = ""
            self.kind = "none"
            self.defs = []
            self.uses = []
            return
        parts = t.split(None, 1)
        self.op = parts[0]
        ops = re.split(r",\s*(?![^\[]*\])", parts[1]) if len(parts) > 1 else []
        self.ops = ops
        op = self.op
        R = [regs_of(o) for o in ops]
        flat = lambda x: [r for l in x for r in l]
        self.srcc = []
        if op.startswith("v_mfma"):
            self.kind = "mfma"
            self.passes = 8 if "32x32" in op else 4
            self.defs = R[0]
            self.uses = flat(R[1:])
            self.ab = R[1] + R[2]
            self.srcc = R[3]
        elif op.startswith("ds_read"):
            self.kind = "ds"
            self.defs = R[0]
            self.uses = flat(R[1:])
        elif op.startswith("ds_write"):
            self.kind = "ds"
            self.defs = []
            self.uses = flat(R)
        elif op.startswith("buffer_load") or op.startswith("global_load"):
            self.kind = "vmem"
            if " lds" in t or "_lds_" in op:
                self.defs = []
                self.uses = flat(R) + [("m0", 0)]
                self.dma = True
            else:
                self.defs = R[0]
                self.uses = flat(R[1:])
                self.dma = False
        elif op.startswith("buffer_store") or op.startswith("global_store"):
            self.kind = "vmem"
            self.dma = False
            self.defs = []
            self.uses = flat(R)
            self.store = True
        elif op.startswith("v_"):
            self.kind = "valu"
            self.defs = R[0]
            self.uses = flat(R[1:])
            if op.startswith(("v_fmac", "v_permlane", "v_dot2c")):
                self.uses += R[0]
            if op.startswith("v_permlane"):
                self.defs = R[0] + R[1]
        elif op.startswith(("s_load", "s_memtime", "s_memrealtime")):
            self.kind = "smem"
            self.defs = R[0]
            self.uses = flat(R[1:])
        elif op in ("s_waitcnt", "s_nop", "s_barrier", "s_endpgm", "s_setprio", "s_branch", "s_sleep") or op.startswith("s_cbranch"):
            self.kind = "ctl"
            self.defs = []
            self.uses = []
        elif op.startswith("s_cmp"):
            self.kind = "salu"
            self.defs = []
            self.uses = flat(R)
        else:
            self.kind = "salu"
            self.defs = R[0]
            self.uses = flat(R[1:])
            if op.startswith(("s_addk", "s_mulk")):
                self.uses += R[0]
        self.trans = op.replace("_e32", "").replace("_e64", "") in TRANS

    def states(self):
        if self.kind == "none":
            return 0
        if self.op == "s_nop":
            return int(self.ops[0]) + 1
        return 1


def need_states(p, c):
    pd, cu, cd = set(p.defs), set(c.uses), set(c.defs)
    vec = lambda s: {r for r in s if r[0] in "va"}
    sca = lambda s: {r for r in s if r[0] in ("s", "vcc")}
    n = 0
    if p.kind == "valu":
        if c.kind == "mfma" and vec(pd) & cu:
            n = max(n, 2)
        if p.trans and c.kind == "valu" and not c.trans and vec(pd) & cu:
            n = max(n, 1)
        if p.trans and c.kind in ("ds", "vmem") and vec(pd) & cu:
            n = max(n, 1)
        if c.kind == "valu" and sca(pd) & cu:
            n = max(n, 4 if c.op.startswith(("v_readlane", "v_writelane")) else 2)
        if c.kind == "vmem" and sca(pd) & cu:
            n = max(n, 5)
        if c.kind == "salu" and sca(pd) & cu:
            n = max(n, 1)
        if c.op.startswith(("v_readfirstlane", "v_readlane")) and vec(pd) & cu:
            n = max(n, 1)
        if c.op.startswith("v_permlane") and vec(pd) & cu:
            n = max(n, 2)
        if ("dpp" in c.text or "row_" in c.text) and vec(pd) & cu:
            n = max(n, 2)
        if "sdwa" in p.op and c.kind == "valu" and vec(pd) & cu and "dst_sel:DWORD" not in p.text:
            n = max(n, 1)
        if p.op.startswith("v_dot") and c.kind != "none" and vec(pd) & (cu | cd):
            n = max(n, 3)
    if p.kind == "mfma":
        big = p.passes == 8
        if c.kind == "mfma":
            if pd & set(c.ab):
                n = max(n, 12 if big else 8)
            if pd & set(c.srcc):
                if not (p.defs == c.srcc and p.passes == c.passes):
                    n = max(n, 10 if big else 6)
            elif pd & cd:
                n = max(n, 10 if big else 6)
        elif c.kind in ("valu", "ds", "vmem"):
            if pd & (cu | cd):
                n = max(n, 12 if big else 8)
            if c.kind == "valu" and set(p.srcc) & cd:
                n = max(n, 7 if big else 3)
    if p.kind == "salu" and ("m0", 0) in pd and c.kind == "vmem" and getattr(c, "dma", False):
        n = max(n, 1)
    if p.kind == "vmem" and getattr(p, "store", False) and "x4" in p.op and c.kind in ("valu", "ds", "vmem"):
        if vec(set(p.uses)) & cd:
            n = max(n, 2)
    return n


class Prog:
    def __init__(self):
        self.segs = {}
        self.order = []
        self.cur = None

    def seg(self, name):
        self.segs[name] = []
        self.order.append(name)
        self.cur = self.segs[name]

    def __call__(self, text):
        for line in text.strip("\n").split("\n"):
            if line.strip():
                self.cur.append(Ins(line.strip()))

    def trace(self, names):
        return [i for n in names for i in self.segs[n]]

    def auto_lgkm(self, traces):
        changed = True
        while changed:
            changed = False
            for tr in traces:
                q = []
                smem = []
                for ins in self.trace(tr):
                    def apply(n):
                        nonlocal q, smem
                        if n == 0:
                            smem = []
                        q = q[len(q) - n:] if 0 < n < len(q) else ([] if n == 0 else q)
                    if ins.lgkm is not None:
                        apply(ins.lgkm)
                    if ins.op == "s_waitcnt":
                        m = re.search(r"lgkmcnt\((\d+)\)", ins.text)
                        if m:
                            apply(int(m.group(1)))
                        continue
                    touched = set(ins.uses) | set(ins.defs)
                    if set(smem) & touched:
                        raise RuntimeError("unwaited smem result used by: " + ins.text)
                    need = None
                    for k, d in enumerate(q):
                        if d & touched:
                            need = len(q) - 1 - k
                    if need is not None:
                        need = min(need, 15)
                        if smem:
                            need = 0
                        ins.lgkm = need if ins.lgkm is None else min(ins.lgkm, need)
                        changed = True
                        apply(need)
                    if ins.kind == "ds":
                        q.append(set(ins.defs))
                    if ins.kind == "smem":
                        smem += ins.defs

    def check_vm(self, traces):
        for tr in traces:
            q = []
            for ins in self.trace(tr):
                if ins.op == "s_waitcnt":
                    m = re.search(r"vmcnt\((\d+)\)", ins.text)
                    if m:
                        n = int(m.group(1))
                        q = q[len(q) - n:] if 0 < n < len(q) else ([] if n == 0 else q)
                    continue
                touched = set(ins.uses) | set(ins.defs)
                for k, d in enumerate(q):
                    if d & touched:
                        raise RuntimeError("needs vmcnt(%d): %s" % (len(q) - 1 - k, ins.text))
                if ins.kind == "vmem":
                    q.append(set(ins.defs))

    def fix_hazards(self, traces):
        changed = True
        while changed:
            changed = False
            for tr in traces:
                t = self.trace(tr)
                for ci, c in enumerate(t):
                    if c.kind in ("none", "ctl"):
                        continue
                    dist = c.nops + (1 if c.lgkm is not None else 0)
                    pi = ci - 1
                    while pi >= 0 and dist < 14:
                        p = t[pi]
                        n = need_states(p, c)
                        if n > dist:
                            c.nops += n - dist
                            dist = n
                            changed = True
                        dist += p.states() + p.nops + (1 if p.lgkm is not None else 0)
                        pi -= 1

    def emit(self):
        out = []
        for n in self.order:
            for ins in self.segs[n]:
                if ins.lgkm is not None:
                    out.append("    s_waitcnt lgkmcnt(%d)" % ins.lgkm)
                if ins.nops:
                    out.append("    s_nop %d" % (ins.nops - 1))
                out.append(ins.text if (ins.label or ins.text.startswith(".")) else "    " + ins.text)
        return "\n".join(out) + "\n"

    def stats(self, name):
        d = {}
        for ins in self.segs[name]:
            k = "trans" if getattr(ins, "trans", False) else ins.kind
            d[k] = d.get(k, 0) + 1
            if ins.lgkm is not None:
                d["lgkmwait"] = d.get("lgkmwait", 0) + 1
            if ins.nops:
                d["nopstates"] = d.get("nopstates", 0) + ins.nops
        return d


def weave(main, inserts):
    out = []
    for i, m in enumerate(main):
        out += inserts.get(i, [])
        out.append(m)
    for k in sorted(inserts):
        if k >= len(main):
            out += inserts[k]
    return out
```

```python
import sys, struct
from asmlib import Prog, weave

NAME = "standalone__sequential_behavior_din__recsys_kernel"
HDR = open("standalone__sequential_behavior_din__recsys.s.ref").read().split("; Override")[0]

def f2u(x):
    return struct.unpack("<I", struct.pack("<f", x))[0]

def vr(b, n=1):
    return f"v{b}" if n == 1 else f"v[{b}:{b+n-1}]"
def ar(b, n=1):
    return f"a{b}" if n == 1 else f"a[{b}:{b+n-1}]"

def gen(D=3, hpol="nt", spol="", tpol="nt", skip=True, stamps=False, pkadd=True):
    R = D + 2
    SLOT = 4224
    TBL = 24576
    WB0 = TBL + 1024
    LIST, TGT, SM, RING = 0, 2048, 4224, 5248
    WSZ = RING + R * SLOT
    LDS = WB0 + 4 * WSZ
    assert LDS <= 163840
    LANE, CH, HA, TA, LA, LD, K1, KS, SA, ZERO, E, EX, A1, AS, MK, S_ = range(1, 17)
    HIM = 17
    OA = 18
    T0, T1, T2, T3, T4, T5 = range(19, 25)
    DA = 25
    H, P, TE, Z, SG, HT, OUT, CT, SB, SC, OH, B2, DE, U = 32, 48, 64, 96, 128, 144, 160, 176, 184, 188, 192, 196, 200, 204
    M_, LO = 224, 232
    B1 = 240
    WA, WD, W2, TT, WBC = 0, 32, 64, 80, 96
    M32 = "v_mfma_f32_32x32x16_bf16"
    M16 = "v_mfma_f32_16x16x32_bf16"
    p = Prog()
    nst = [0]
    def stamp():
        if stamps:
            p(f"s_memrealtime s[{60+2*nst[0]}:{61+2*nst[0]}]\ns_waitcnt lgkmcnt(0)")
            nst[0] += 1

    p.seg("pro")
    if stamps:
        p("s_memrealtime s[60:61]"); nst[0] = 1
    p(f"""
s_cmp_ge_u32 s2, 256
s_cbranch_scc1 L_end
s_load_dwordx16 s[4:19], s[0:1], 0
v_lshrrev_b32 v{T0}, 6, v0
v_and_b32 v{LANE}, 63, v0
v_readfirstlane_b32 s3, v{T0}
s_lshl_b32 s20, s2, 2
s_mov_b32 s22, 0xff80
s_add_u32 s20, s20, s3
s_mul_i32 s50, s20, 640
v_lshl_add_u32 v{T0}, v{LANE}, 1, s50
v_lshrrev_b32 v{T1}, 2, v0
v_and_b32 v{T2}, 3, v0
v_lshlrev_b32 v{T3}, 4, v{T2}
v_lshl_add_u32 v{U}, v{T1}, 7, v{T3}
v_add_u32 v{U+1}, 0x2000, v{U}
v_add_u32 v{U+2}, 0x4000, v{U}
v_add_u32 v{U+3}, 0x6000, v{U}
s_mul_i32 s21, s3, {WSZ}
s_add_u32 s21, s21, {WB0}
v_bfe_u32 v{T3}, v{LANE}, 4, 1
v_and_b32 v{T4}, 7, v{LANE}
v_xor_b32 v{T3}, v{T3}, v{T4}
v_lshlrev_b32 v{CH}, 4, v{T3}
v_lshrrev_b32 v{T4}, 3, v{LANE}
v_lshl_add_u32 v{T5}, v{T4}, 7, v{CH}
s_lshl_b32 s51, s20, 11
v_add_u32 v{T5}, s51, v{T5}
s_add_u32 s52, s21, {LIST}
v_lshl_add_u32 v{LD}, v{T4}, 4, s52
s_add_u32 m0, s21, {TGT}
s_mul_i32 s53, s20, 40960
s_mov_b32 s26, 40960
s_mov_b32 s27, 0x20000
s_mov_b32 s30, 128
s_mov_b32 s31, 0x20000
s_waitcnt lgkmcnt(0)
""")
    stamp()
    for q in range(5):
        p(f"global_load_ushort v{M_+q}, v{T0}, s[8:9] offset:{128*q}")
    for blk in range(4):
        for u in range(2):
            p(f"global_load_dwordx4 {vr(32+8*blk+4*u,4)}, v{U+blk}, s[10:11] offset:{64*u}")
    p(f"""
global_load_lds_dwordx4 v{T5}, s[4:5] {tpol}
s_add_u32 m0, m0, 32
s_mov_b32 s28, s14
global_load_lds_dwordx4 v{T5}, s[4:5] offset:1024 {tpol}
s_mov_b32 s29, s15
s_add_u32 s24, s6, s53
s_addc_u32 s25, s7, 0
""")
    p(f"""
v_bfe_u32 v{T0}, v{LANE}, 2, 1
v_bfe_u32 v{T3}, v{LANE}, 3, 2
v_and_b32 v{T4}, 3, v{LANE}
v_lshl_add_u32 v{T4}, v{T3}, 2, v{T4}
v_lshl_add_u32 v{T4}, v{T0}, 4, v{T4}
v_lshlrev_b32 v{T4}, 1, v{T4}
global_load_ushort v{B1}, v{T4}, s[12:13]
global_load_ushort v{B1+1}, v{T4}, s[12:13] offset:64
v_bfe_u32 v{T3}, v{LANE}, 4, 1
v_xor_b32 v{T3}, v{T3}, v{T0}
v_and_b32 v{T4}, 32, v{LANE}
v_lshl_add_u32 v{T4}, v{T3}, 12, v{T4}
""")
    for q in range(4):
        p(f"buffer_load_dwordx4 {ar(W2+4*q,4)}, v{T4}, s[28:31], 0 offen offset:{64*(q>>1)+16*(q&1)}")
    p(f"""
v_mov_b32 v{ZERO}, 0
global_load_ushort v{B2}, v{ZERO}, s[16:17]
""")
    p(f"""
v_mov_b32 v{Z}, s22
v_mov_b32 v{Z+1}, s22
v_mov_b32 v{Z+2}, s22
v_mov_b32 v{Z+3}, s22
v_lshl_add_u32 v{SA}, v{LANE}, 4, s21
ds_write_b128 v{SA}, {vr(Z,4)} offset:{LIST}
ds_write_b128 v{SA}, {vr(Z,4)} offset:{LIST+1024}
v_mov_b32 v{SC}, 0
v_mov_b32 v{SC+1}, 0
v_mov_b32 v{SC+2}, 0
v_mov_b32 v{SC+3}, 0
ds_write_b128 v{SA}, {vr(SC,4)} offset:{SM}
v_lshlrev_b32 v{T2}, 1, v{T2}
v_sub_u32 v{T1}, v{T1}, v{T2}
v_mov_b32 v{T3}, 0x3f80
v_mov_b32 v{T4}, 0x3f800000
v_cmp_eq_u32 vcc, 8, v{T1}
v_cmp_eq_u32_e64 s[54:55], 9, v{T1}
v_lshlrev_b32 v{T5}, 2, v0
v_cndmask_b32 v{T2}, v{ZERO}, v{T3}, vcc
v_cndmask_b32_e64 v{T2}, v{T2}, v{T4}, s[54:55]
ds_write_b32 v{T5}, v{T2} offset:{TBL}
s_mov_b32 s54, 52429
""")
    for q in range(5):
        p(f"""
v_add_u32 v{T0}, {64*q}, v{LANE}
v_mul_u32_u24 v{T1}, s54, v{T0}
v_lshrrev_b32 v{T1}, 20, v{T1}
v_lshlrev_b32 v{T1}, 3, v{T1}
v_lshl_or_b32 v{LO+q}, v{T0}, 7, v{T1}
""")
    p(f"""
v_bfe_u32 v{T0}, v{LANE}, 3, 2
v_lshrrev_b32 v{T1}, 1, v{T0}
v_xor_b32 v{T1}, v{T1}, v{T0}
v_and_b32 v{T1}, 1, v{T1}
v_lshlrev_b32 v{T1}, 2, v{T1}
v_and_b32 v{T2}, 7, v{LANE}
v_xor_b32 v{T1}, v{T1}, v{T2}
v_lshrrev_b32 v{T2}, 5, v{LANE}
v_bfe_u32 v{T3}, v{T1}, 1, 1
v_xor_b32 v{T3}, v{T3}, v{T2}
s_add_u32 s34, s21, {RING}
s_add_u32 s33, s34, {R*SLOT}
s_movk_i32 s55, 1056
v_lshl_add_u32 v{T3}, v{T3}, 4, s34
v_lshl_add_u32 v{T3}, v{T1}, 7, v{T3}
v_mad_u32_u24 v{HA}, v{T0}, s55, v{T3}
v_lshl_add_u32 v{T3}, v{T1}, 2, v{T0}
v_lshl_add_u32 v{LA}, v{T3}, 2, s52
v_lshlrev_b32 v{T3}, 7, v{T2}
v_sub_u32 v{K1}, {TBL+128}, v{T3}
v_and_b32 v{T3}, 4, v{T1}
v_add_u32 v{T3}, v{T3}, v{T0}
v_and_b32 v{T4}, 3, v{T1}
s_add_u32 s56, s21, {SM}
v_lshl_add_u32 v{T4}, v{T4}, 8, s56
v_lshl_add_u32 v{KS}, v{T3}, 1, v{T4}
v_mov_b32 v{AS}, v{KS}
v_mov_b32 v{MK}, 0
v_mov_b32 v{HIM}, 0xffff0000
""")
    p("s_waitcnt vmcnt(17)")
    stamp()
    for q in range(5):
        if skip:
            p(f"v_cmp_ne_u32_e64 s[{40+2*q}:{41+2*q}], 0, v{M_+q}")
        else:
            p(f"s_mov_b64 s[{40+2*q}:{41+2*q}], -1")
    p("s_lshr_b32 s57, s52, 2")
    for q in range(5):
        p(f"""
v_mbcnt_lo_u32_b32 v{T0}, s{40+2*q}, 0
v_mbcnt_hi_u32_b32 v{T0}, s{41+2*q}, v{T0}
v_lshl_or_b32 v{T1}, v{M_+q}, 16, v{LO+q}
v_add_lshl_u32 v{T0}, v{T0}, s57, 2
s_bcnt1_i32_b64 s58, s[{40+2*q}:{41+2*q}]
s_mov_b64 exec, s[{40+2*q}:{41+2*q}]
ds_write_b32 v{T0}, v{T1}
s_mov_b64 exec, -1
s_add_u32 s57, s57, s58
""")
    for t in range(D):
        p(f"ds_read_b128 {vr(TE+4*t,4)}, v{LD} offset:{128*t}")
    p(f"""
ds_read_b32 v{E}, v{LA}
s_lshr_b32 s58, s52, 2
s_sub_u32 s57, s57, s58
s_add_u32 s57, s57, 31
s_lshr_b32 s23, s57, 5
s_max_u32 s23, s23, 1
s_mov_b32 m0, s34
v_add_u32 v{LD}, {128*D}, v{LD}
""")
    for t in range(D):
        for m in range(4):
            p(f"""
v_and_or_b32 v{DA}, v{TE+4*t+m}, s22, v{CH}
buffer_load_dwordx4 v{DA}, s[24:27], 0 offen {hpol} lds
s_addk_i32 m0, 1056
""")
    stamp()
    p(f"""
v_lshrrev_b32 v{T0}, 4, v{LANE}
v_bfe_u32 v{T1}, v{LANE}, 2, 2
v_and_b32 v{T2}, 3, v{LANE}
v_lshrrev_b32 v{T3}, 5, v{LANE}
v_xor_b32 v{T4}, v{T2}, v{T3}
v_lshl_add_u32 v{T4}, v{T4}, 4, s34
v_lshl_add_u32 v{T4}, v{T0}, 7, v{T4}
v_mad_u32_u24 v{TA}, v{T1}, s55, v{T4}
v_and_b32 v{T4}, 15, v{LANE}
v_lshlrev_b32 v{T4}, 7, v{T4}
v_lshl_add_u32 v{T4}, v{T0}, 4, v{T4}
v_add_u32 v{OA}, s51, v{T4}
s_mov_b32 s38, {hex(f2u(-1.4426950408889634))}
s_mov_b32 s36, 0
s_mov_b32 s37, 0
""")
    p(f"s_waitcnt vmcnt({4*D+9})")
    stamp()
    X = 96
    for blk in range(4):
        for k in range(8):
            p(f"v_lshlrev_b32 v{X+16*blk+2*k}, 16, v{32+8*blk+k}\nv_and_b32 v{X+16*blk+2*k+1}, v{HIM}, v{32+8*blk+k}")
    for k in range(8):
        a, b, c, d = (X + 16*j + 2*k for j in range(4))
        p(f"""
v_pk_mul_f32 {vr(c,2)}, {vr(c,2)}, s[38:39] op_sel_hi:[1,0]
v_pk_mul_f32 {vr(d,2)}, {vr(d,2)}, s[38:39] op_sel_hi:[1,0]
v_pk_fma_f32 {vr(a,2)}, {vr(a,2)}, s[38:39], {vr(c,2)} op_sel_hi:[1,0,1]
v_pk_fma_f32 {vr(b,2)}, {vr(b,2)}, s[38:39], {vr(c,2)} op_sel_hi:[1,0,1] neg_lo:[0,0,1] neg_hi:[0,0,1]
""")
    p(f"v_lshlrev_b32 v{T5}, 4, v0")
    for oblk, j in ((2, 1), (0, 0), (1, 3)):
        for k in range(8):
            p(f"v_cvt_pk_bf16_f32 v{32+8*oblk+k}, v{X+16*j+2*k}, v{X+16*j+2*k+1}")
        for u in range(2):
            p(f"ds_write_b128 v{T5}, {vr(32+8*oblk+4*u,4)} offset:{8192*oblk+4096*u}")
    p(f"""
v_and_b32 v{T0}, 1, v{T0}
v_lshl_add_u32 v{T4}, v{T3}, 3, v{T1}
v_lshlrev_b32 v{T4}, 6, v{T4}
v_and_b32 v{T5}, 1, v{T2}
v_lshl_add_u32 v{T4}, v{T5}, 5, v{T4}
v_lshrrev_b32 v{T2}, 1, v{T2}
v_lshl_add_u32 v{U}, v{T0}, 1, v{T2}
v_lshl_add_u32 v{U}, v{U}, 3, v{T4}
v_lshl_add_u32 v{T4}, v{T0}, 1, v{T5}
v_lshrrev_b32 v{T5}, 1, v{T1}
v_xor_b32 v{T4}, v{T4}, v{T5}
s_add_u32 s56, s21, {TGT}
v_lshl_add_u32 v{T4}, v{T4}, 4, s56
v_lshl_add_u32 v{T4}, v{T2}, 3, v{T4}
v_lshl_add_u32 v{T4}, v{T1}, 7, v{T4}
v_mad_u32_u24 v{U+1}, v{T3}, s55, v{T4}
v_bfe_u32 v{T0}, v{LANE}, 2, 1
v_bfe_u32 v{T1}, v{LANE}, 3, 1
v_and_b32 v{T2}, 3, v{LANE}
v_lshl_add_u32 v{T1}, v{T1}, 2, v{T2}
v_lshrrev_b32 v{T2}, 1, v{T2}
v_xor_b32 v{T2}, v{T2}, v{T3}
v_lshl_add_u32 v{T2}, v{T2}, 4, s56
v_lshl_add_u32 v{T2}, v{T1}, 7, v{T2}
v_mad_u32_u24 v{U+2}, v{T0}, s55, v{T2}
v_and_b32 v{EX}, 0x78, v{E}
v_lshl_add_u32 v{A1}, v{EX}, 1, v{K1}
s_waitcnt vmcnt({4*D}) lgkmcnt(0)
s_barrier
""")
    stamp()
    for s in range(4):
        p(f"ds_read_b128 {vr(H+4*s,4)}, v{U+2} offset:{32*s}")
    def wfrag(dst, blk):
        for u in range(2):
            for s in range(4):
                for y in range(2):
                    p(f"ds_read_b64_tr_b16 {ar(dst+16*u+4*s+2*y,2)}, v{U} offset:{8192*blk+4096*u+1024*s+256*y}")
    wfrag(WBC, 2)
    for v in range(2):
        for y in range(2):
            p(f"ds_read_b64_tr_b16 {ar(TT+4*v+2*y,2)}, v{U+1} offset:{512*y+64*v}")
    p(f"ds_read_b128 {vr(OH,4)}, v{A1}")
    for u in range(2):
        for s in range(4):
            c = "0" if s == 0 else vr(Z+16*u, 16)
            p(f"{M32} {vr(Z+16*u,16)}, {vr(H+4*s,4)}, {ar(WBC+16*u+4*s,4)}, {c}")
    wfrag(WA, 0)
    wfrag(WD, 1)
    for v in range(2):
        p(f"{M32} {vr(TE+16*v,16)}, {ar(TT+4*v,4)}, {vr(OH,4)}, 0")
    p(f"""
v_lshlrev_b32 v{B1}, 16, v{B1}
v_lshlrev_b32 v{B1+1}, 16, v{B1+1}
v_lshlrev_b32 v{B2}, 16, v{B2}
v_mov_b32 v{B2+1}, 0
v_mov_b32 v{B2+2}, 0
v_mov_b32 v{B2+3}, 0
""")
    for k in range(16):
        p(f"v_mov_b32 v{OUT+k}, 0")
    for u in range(2):
        for r in range(8):
            p(f"v_fmac_f32 v{Z+16*u+r}, s38, v{B1+u}")
        for k in range(4):
            p(f"v_cvt_pk_bf16_f32 v{CT+4*u+k}, v{Z+16*u+2*k}, v{Z+16*u+2*k+1}")
    p(f"{M32} {vr(Z,16)}, {vr(CT,4)}, {vr(OH,4)}, 0")
    p(f"v_add_u32 v{LA}, 128, v{LA}")
    p("s_waitcnt lgkmcnt(0)")
    stamp()

    def schain():
        return [f"v_mul_f32 v{S_}, v{SC}, v{MK}",
                f"v_cvt_pk_bf16_f32 v{S_}, v{S_}, v{S_}",
                f"ds_write_b16 v{AS}, v{S_}",
                f"ds_read_b128 {vr(SB,4)}, v{SA} offset:{SM}"]
    def trreads():
        return [f"ds_read_b64_tr_b16 {vr(HT+4*dt+2*y,2)}, v{TA} offset:{512*y+64*(dt>>1)+8*(dt&1)}" for dt in range(4) for y in range(2)]
    def finals():
        return [f"{M16} {vr(OUT+4*dt,4)}, {vr(HT+4*dt,4)}, {vr(SB,4)}, {vr(OUT+4*dt,4)}" for dt in range(4)]
    def main(u, kind, s):
        w, b = (WA, H) if kind == "h" else (WD, P)
        return f"{M32} {vr(Z+16*u,16)}, {ar(w+16*u+4*s,4)}, {vr(b+4*s,4)}, {vr(Z+16*u,16)}"
    def score(q):
        c = vr(B2, 4) if q == 0 else vr(SC, 4)
        return f"{M16} {vr(SC,4)}, {ar(W2+4*q,4)}, {vr(SG+4*q,4)}, {c}"

    p.seg("loop")
    p(".p2align 3\nL_loop:")
    p(f"s_waitcnt vmcnt({4*(D-1)})")
    for s in range(4):
        p(f"ds_read_b128 {vr(H+4*s,4)}, v{HA} offset:{32*s}")
    p(f"{M32} {vr(Z+16,16)}, {vr(CT+4,4)}, {vr(OH,4)}, 0")
    p(f"ds_read_b128 {vr(DE,4)}, v{LD}")
    p(f"""
s_add_u32 s50, s36, {SLOT}
s_cmp_eq_u32 s50, {R*SLOT}
s_cselect_b32 s50, 0, s50
s_sub_u32 s35, s50, s36
s_mov_b32 s36, s50
""")
    for x in schain(): p(x)
    p(f"""
ds_write_b16 v{AS}, v{ZERO}
v_add_u32 v{HA}, s35, v{HA}
v_lshl_add_u32 v{AS}, v{EX}, 1, v{KS}
v_and_b32 v{MK}, v{HIM}, v{E}
v_add_u32 v{LD}, 128, v{LD}
""")
    prod = []
    for s in range(4):
        for q in range(0, 4, 2):
            for qq in (q, q+1):
                prod += [f"v_lshlrev_b32 v{U+2*(qq&1)}, 16, v{H+4*s+qq}", f"v_and_b32 v{U+2*(qq&1)+1}, v{HIM}, v{H+4*s+qq}"]
            for qq in (q, q+1):
                prod += [f"v_mul_f32 v{U+2*(qq&1)}, v{U+2*(qq&1)}, v{TE+8*s+2*qq}", f"v_mul_f32 v{U+2*(qq&1)+1}, v{U+2*(qq&1)+1}, v{TE+8*s+2*qq+1}"]
            for qq in (q, q+1):
                prod += [f"v_cvt_pk_bf16_f32 v{P+4*s+qq}, v{U+2*(qq&1)}, v{U+2*(qq&1)+1}"]
    tr = trreads()
    dma = []
    for m in range(4):
        dma.append([f"v_and_or_b32 v{DA}, v{DE+m}, s22, v{CH}", f"buffer_load_dwordx4 v{DA}, s[24:27], 0 offen {hpol} lds", "s_addk_i32 m0, 1056"])
    order = [(0,"h",0),(0,"h",1),(0,"h",2),(0,"h",3),(0,"p",0),(1,"h",0),(1,"h",1),(0,"p",1),(1,"h",2),(1,"h",3),(1,"p",0),(0,"p",2),(1,"p",1)]
    ins = {}
    for k, o in enumerate(order):
        l = [main(*o)]
        if k < 8: l.append(tr[k])
        ins[6*k] = l
    body = weave(prod, ins)
    for x in body: p(x)
    p(main(1, "p", 2))
    p(f"v_add_u32 v{TA}, s37, v{TA}")
    p(main(0, "p", 3))
    p("s_mov_b32 s37, s35")
    for m in range(4):
        for x in dma[m]: p(x)
        if m == 1:
            p(main(1, "p", 3))
    p("s_cmp_eq_u32 m0, s33\ns_cselect_b32 m0, s34, m0")
    def sigmoid(u, ins_exp, ins_rcp):
        z = Z + 16*u
        a = [f"v_exp_f32 v{z+r}, v{z+r}" for r in range(16)]
        if pkadd:
            b = [f"v_pk_add_f32 {vr(z+2*k,2)}, {vr(z+2*k,2)}, 1.0 op_sel_hi:[1,0]" for k in range(8)]
        else:
            b = [f"v_add_f32 v{z+r}, 1.0, v{z+r}" for r in range(16)]
        c = []
        for k in range(8):
            c += [f"v_rcp_f32 v{z+2*k}, v{z+2*k}", f"v_rcp_f32 v{z+2*k+1}, v{z+2*k+1}"]
            if k > 0:
                c.append(f"v_cvt_pk_bf16_f32 v{SG+8*u+k-1}, v{z+2*k-2}, v{z+2*k-1}")
        c2 = weave(c, ins_rcp)
        c2.append(f"v_cvt_pk_bf16_f32 v{SG+8*u+7}, v{z+14}, v{z+15}")
        return weave(a, ins_exp) + b + c2
    fin = finals()
    for x in sigmoid(0, {2: [fin[0], f"ds_read_b32 v{E}, v{LA}"], 4: [fin[1]], 6: [fin[2]], 8: [fin[3]]},
                     {1: [f"v_and_b32 v{EX}, 0x78, v{E}", f"v_lshl_add_u32 v{A1}, v{EX}, 1, v{K1}", f"ds_read_b128 {vr(OH,4)}, v{A1}"],
                      17: [score(0)], 23: [f"v_add_u32 v{LA}, 128, v{LA}"]}):
        p(x)
    for x in sigmoid(1, {2: [score(1)], 3: [f"{M32} {vr(TE,16)}, {ar(TT,4)}, {vr(OH,4)}, 0", "s_sub_u32 s23, s23, 1"],
                         6: [f"{M32} {vr(TE+16,16)}, {ar(TT+4,4)}, {vr(OH,4)}, 0"]},
                     {2: [f"{M32} {vr(Z,16)}, {vr(CT,4)}, {vr(OH,4)}, 0"], 17: [score(2)], 23: ["s_cmp_lg_u32 s23, 0"]}):
        p(x)
    p(score(3))
    p("s_cbranch_scc1 L_loop")

    p.seg("epi")
    stamp()
    for x in trreads(): p(x)
    for x in schain(): p(x)
    for x in finals(): p(x)
    for k in range(8):
        p(f"v_cvt_pk_bf16_f32 v{H+k}, v{OUT+2*k}, v{OUT+2*k+1}")
    p(f"global_store_dwordx4 v{OA}, {vr(H,4)}, s[18:19] {spol}")
    p(f"global_store_dwordx4 v{OA}, {vr(H+4,4)}, s[18:19] offset:64 {spol}")
    if stamps:
        p("s_waitcnt vmcnt(0)")
        stamp()
        p("s_load_dwordx2 s[4:5], s[0:1], 72\ns_lshl_b32 s50, s20, 6\nv_mov_b32 v1, s50\ns_waitcnt lgkmcnt(0)")
        for i in range(nst[0]):
            p(f"v_mov_b32 v2, s{60+2*i}\nglobal_store_dword v1, v2, s[4:5] offset:{4*i}")
        p(f"v_mov_b32 v2, s57\nglobal_store_dword v1, v2, s[4:5] offset:60")
    p("L_end:")
    traces = [["pro", "loop", "epi"], ["pro", "loop", "loop", "loop", "epi"]]
    p.auto_lgkm(traces)
    p.check_vm(traces)
    p.fix_hazards(traces)
    sys.stderr.write("pro %s\nloop %s\nepi %s\n" % (p.stats("pro"), p.stats("loop"), p.stats("epi")))
    text = HDR + f"""; @launch grid=(256,1,1) block=(256,1,1) lds={LDS}
.amdgcn_target "amdgcn-amd-amdhsa--gfx950"
.text
.globl {NAME}
.p2align 8
.type {NAME},@function
{NAME}:
""" + p.emit() + f"""    s_endpgm
.section .rodata,"a"
.p2align 6
.amdhsa_kernel {NAME}
  .amdhsa_next_free_vgpr 384
  .amdhsa_next_free_sgpr 96
  .amdhsa_accum_offset 256
  .amdhsa_group_segment_fixed_size 0
  .amdhsa_kernarg_size 80
  .amdhsa_user_sgpr_count 2
  .amdhsa_user_sgpr_kernarg_segment_ptr 1
  .amdhsa_system_sgpr_workgroup_id_x 1
  .amdhsa_float_denorm_mode_32 3
.end_amdhsa_kernel
"""
    return text, LDS

if __name__ == "__main__":
    kw = eval("dict(%s)" % (sys.argv[2] if len(sys.argv) > 2 else ""))
    open(sys.argv[1], "w").write(gen(**kw)[0])
```

```python
import sys, struct
from asmlib import Prog, weave

NAME = "standalone__sequential_behavior_din__recsys_kernel"
HDR = open("standalone__sequential_behavior_din__recsys.s.ref").read().split("; Override")[0]

def f2u(x):
    return struct.unpack("<I", struct.pack("<f", x))[0]

def vr(b, n=1):
    return f"v{b}" if n == 1 else f"v[{b}:{b+n-1}]"
def ar(b, n=1):
    return f"a{b}" if n == 1 else f"a[{b}:{b+n-1}]"

def gen(D=3, hpol="nt", spol="", tpol="nt", skip=True, stamps=False, pkadd=True, probe=None):
    if probe: stamps = True
    R = D + 2
    SLOT = 4224
    TBL = 24576
    WB0 = TBL + 1024
    LIST, TGT, SM, RING = 0, 2048, 4224, 5248
    WSZ = RING + R * SLOT
    LDS = WB0 + 4 * WSZ
    assert LDS <= 163840
    LANE, CH, HA, TA, LA, LD, K1, KS, SA, ZERO, E, EX, A1, AS, MK, S_ = range(1, 17)
    HIM = 17
    OA = 18
    T0, T1, T2, T3, T4, T5 = range(19, 25)
    DA = 25
    H, P, TE, Z, SG, HT, OUT, CT, SB, SC, OH, B2, DE, U = 32, 48, 64, 96, 128, 144, 160, 176, 184, 188, 192, 196, 200, 204
    M_, LO = 224, 232
    B1 = 240
    WA, WD, W2, TT, WBC = 0, 32, 64, 80, 96
    M32 = "v_mfma_f32_32x32x16_bf16"
    M16 = "v_mfma_f32_16x16x32_bf16"
    p = Prog()
    nst = [0]
    def stamp():
        if stamps:
            p(f"s_memrealtime s[{60+2*nst[0]}:{61+2*nst[0]}]\ns_waitcnt lgkmcnt(0)")
            nst[0] += 1

    p.seg("pro")
    if stamps:
        p("s_memrealtime s[60:61]"); nst[0] = 1
    p(f"""
s_cmp_ge_u32 s2, 256
s_cbranch_scc1 L_end
s_load_dwordx16 s[4:19], s[0:1], 0
v_lshrrev_b32 v{T0}, 6, v0
v_and_b32 v{LANE}, 63, v0
v_readfirstlane_b32 s3, v{T0}
s_lshl_b32 s20, s2, 2
s_mov_b32 s22, 0xff80
s_add_u32 s20, s20, s3
s_mul_i32 s50, s20, 640
v_lshl_add_u32 v{T0}, v{LANE}, 1, s50
v_lshrrev_b32 v{T1}, 2, v0
v_and_b32 v{T2}, 3, v0
v_lshlrev_b32 v{T3}, 4, v{T2}
v_lshl_add_u32 v{U}, v{T1}, 7, v{T3}
v_add_u32 v{U+1}, 0x2000, v{U}
v_add_u32 v{U+2}, 0x4000, v{U}
v_add_u32 v{U+3}, 0x6000, v{U}
s_mul_i32 s21, s3, {WSZ}
s_add_u32 s21, s21, {WB0}
v_bfe_u32 v{T3}, v{LANE}, 4, 1
v_and_b32 v{T4}, 7, v{LANE}
v_xor_b32 v{T3}, v{T3}, v{T4}
v_lshlrev_b32 v{CH}, 4, v{T3}
v_lshrrev_b32 v{T4}, 3, v{LANE}
v_lshl_add_u32 v{T5}, v{T4}, 7, v{CH}
s_lshl_b32 s51, s20, 11
v_add_u32 v{T5}, s51, v{T5}
s_add_u32 s52, s21, {LIST}
v_lshl_add_u32 v{LD}, v{T4}, 4, s52
s_add_u32 m0, s21, {TGT}
s_mul_i32 s53, s20, 40960
s_mov_b32 s26, 40960
s_mov_b32 s27, 0x20000
s_mov_b32 s30, 128
s_mov_b32 s31, 0x20000
s_waitcnt lgkmcnt(0)
""")
    stamp()
    for q in range(5):
        p(f"global_load_ushort v{M_+q}, v{T0}, s[8:9] offset:{128*q}")
    for blk in range(4):
        for u in range(2):
            p(f"global_load_dwordx4 {vr(32+8*blk+4*u,4)}, v{U+blk}, s[10:11] offset:{64*u}")
    p(f"""
global_load_lds_dwordx4 v{T5}, s[4:5] {tpol}
s_add_u32 m0, m0, 32
s_mov_b32 s28, s14
global_load_lds_dwordx4 v{T5}, s[4:5] offset:1024 {tpol}
s_mov_b32 s29, s15
s_add_u32 s24, s6, s53
s_addc_u32 s25, s7, 0
""")
    p(f"""
v_bfe_u32 v{T0}, v{LANE}, 2, 1
v_bfe_u32 v{T3}, v{LANE}, 3, 2
v_and_b32 v{T4}, 3, v{LANE}
v_lshl_add_u32 v{T4}, v{T3}, 2, v{T4}
v_lshl_add_u32 v{T4}, v{T0}, 4, v{T4}
v_lshlrev_b32 v{T4}, 1, v{T4}
global_load_ushort v{B1}, v{T4}, s[12:13]
global_load_ushort v{B1+1}, v{T4}, s[12:13] offset:64
v_bfe_u32 v{T3}, v{LANE}, 4, 1
v_xor_b32 v{T3}, v{T3}, v{T0}
v_and_b32 v{T4}, 32, v{LANE}
v_lshl_add_u32 v{T4}, v{T3}, 12, v{T4}
""")
    for q in range(4):
        p(f"buffer_load_dwordx4 {ar(W2+4*q,4)}, v{T4}, s[28:31], 0 offen offset:{64*(q>>1)+16*(q&1)}")
    p(f"""
v_mov_b32 v{ZERO}, 0
global_load_ushort v{B2}, v{ZERO}, s[16:17]
""")
    p(f"""
v_mov_b32 v{Z}, s22
v_mov_b32 v{Z+1}, s22
v_mov_b32 v{Z+2}, s22
v_mov_b32 v{Z+3}, s22
v_lshl_add_u32 v{SA}, v{LANE}, 4, s21
ds_write_b128 v{SA}, {vr(Z,4)} offset:{LIST}
ds_write_b128 v{SA}, {vr(Z,4)} offset:{LIST+1024}
v_mov_b32 v{SC}, 0
v_mov_b32 v{SC+1}, 0
v_mov_b32 v{SC+2}, 0
v_mov_b32 v{SC+3}, 0
ds_write_b128 v{SA}, {vr(SC,4)} offset:{SM}
v_lshlrev_b32 v{T2}, 1, v{T2}
v_sub_u32 v{T1}, v{T1}, v{T2}
v_mov_b32 v{T3}, 0x3f80
v_mov_b32 v{T4}, 0x3f800000
v_cmp_eq_u32 vcc, 8, v{T1}
v_cmp_eq_u32_e64 s[54:55], 9, v{T1}
v_lshlrev_b32 v{T5}, 2, v0
v_cndmask_b32 v{T2}, v{ZERO}, v{T3}, vcc
v_cndmask_b32_e64 v{T2}, v{T2}, v{T4}, s[54:55]
ds_write_b32 v{T5}, v{T2} offset:{TBL}
s_mov_b32 s54, 52429
""")
    for q in range(5):
        p(f"""
v_add_u32 v{T0}, {64*q}, v{LANE}
v_mul_u32_u24 v{T1}, s54, v{T0}
v_lshrrev_b32 v{T1}, 20, v{T1}
v_lshlrev_b32 v{T1}, 3, v{T1}
v_lshl_or_b32 v{LO+q}, v{T0}, 7, v{T1}
""")
    p(f"""
v_bfe_u32 v{T0}, v{LANE}, 3, 2
v_lshrrev_b32 v{T1}, 1, v{T0}
v_xor_b32 v{T1}, v{T1}, v{T0}
v_and_b32 v{T1}, 1, v{T1}
v_lshlrev_b32 v{T1}, 2, v{T1}
v_and_b32 v{T2}, 7, v{LANE}
v_xor_b32 v{T1}, v{T1}, v{T2}
v_lshrrev_b32 v{T2}, 5, v{LANE}
v_bfe_u32 v{T3}, v{T1}, 1, 1
v_xor_b32 v{T3}, v{T3}, v{T2}
s_add_u32 s34, s21, {RING}
s_add_u32 s33, s34, {R*SLOT}
s_movk_i32 s55, 1056
v_lshl_add_u32 v{T3}, v{T3}, 4, s34
v_lshl_add_u32 v{T3}, v{T1}, 7, v{T3}
v_mad_u32_u24 v{HA}, v{T0}, s55, v{T3}
v_lshl_add_u32 v{T3}, v{T1}, 2, v{T0}
v_lshl_add_u32 v{LA}, v{T3}, 2, s52
v_lshlrev_b32 v{T3}, 7, v{T2}
v_sub_u32 v{K1}, {TBL+128}, v{T3}
v_and_b32 v{T3}, 4, v{T1}
v_add_u32 v{T3}, v{T3}, v{T0}
v_and_b32 v{T4}, 3, v{T1}
s_add_u32 s56, s21, {SM}
v_lshl_add_u32 v{T4}, v{T4}, 8, s56
v_lshl_add_u32 v{KS}, v{T3}, 1, v{T4}
v_mov_b32 v{AS}, v{KS}
v_mov_b32 v{MK}, 0
v_mov_b32 v{HIM}, 0xffff0000
""")
    p("s_waitcnt vmcnt(17)")
    stamp()
    for q in range(5):
        if skip:
            p(f"v_cmp_ne_u32_e64 s[{40+2*q}:{41+2*q}], 0, v{M_+q}")
        else:
            p(f"s_mov_b64 s[{40+2*q}:{41+2*q}], -1")
    p("s_lshr_b32 s57, s52, 2")
    for q in range(5):
        p(f"""
v_mbcnt_lo_u32_b32 v{T0}, s{40+2*q}, 0
v_mbcnt_hi_u32_b32 v{T0}, s{41+2*q}, v{T0}
v_lshl_or_b32 v{T1}, v{M_+q}, 16, v{LO+q}
v_add_lshl_u32 v{T0}, v{T0}, s57, 2
s_bcnt1_i32_b64 s58, s[{40+2*q}:{41+2*q}]
s_mov_b64 exec, s[{40+2*q}:{41+2*q}]
ds_write_b32 v{T0}, v{T1}
s_mov_b64 exec, -1
s_add_u32 s57, s57, s58
""")
    for t in range(D):
        p(f"ds_read_b128 {vr(TE+4*t,4)}, v{LD} offset:{128*t}")
    p(f"""
ds_read_b32 v{E}, v{LA}
s_lshr_b32 s58, s52, 2
s_sub_u32 s57, s57, s58
s_add_u32 s57, s57, 31
s_lshr_b32 s23, s57, 5
s_max_u32 s23, s23, 1
s_mov_b32 m0, s34
v_add_u32 v{LD}, {128*D}, v{LD}
""")
    for t in range(D):
        for m in range(4):
            p(f"""
v_and_or_b32 v{DA}, v{TE+4*t+m}, s22, v{CH}
buffer_load_dwordx4 v{DA}, s[24:27], 0 offen {hpol} lds
s_addk_i32 m0, 1056
""")
    stamp()
    p(f"""
v_lshrrev_b32 v{T0}, 4, v{LANE}
v_bfe_u32 v{T1}, v{LANE}, 2, 2
v_and_b32 v{T2}, 3, v{LANE}
v_lshrrev_b32 v{T3}, 5, v{LANE}
v_xor_b32 v{T4}, v{T2}, v{T3}
v_lshl_add_u32 v{T4}, v{T4}, 4, s34
v_lshl_add_u32 v{T4}, v{T0}, 7, v{T4}
v_mad_u32_u24 v{TA}, v{T1}, s55, v{T4}
v_and_b32 v{T4}, 15, v{LANE}
v_lshlrev_b32 v{T4}, 7, v{T4}
v_lshl_add_u32 v{T4}, v{T0}, 4, v{T4}
v_add_u32 v{OA}, s51, v{T4}
s_mov_b32 s38, {hex(f2u(-1.4426950408889634))}
s_mov_b32 s36, 0
s_mov_b32 s37, 0
""")
    p(f"s_waitcnt vmcnt({4*D+9})")
    stamp()
    X = 96
    for blk in range(4):
        for k in range(8):
            p(f"v_lshlrev_b32 v{X+16*blk+2*k}, 16, v{32+8*blk+k}\nv_and_b32 v{X+16*blk+2*k+1}, v{HIM}, v{32+8*blk+k}")
    for k in range(8):
        a, b, c, d = (X + 16*j + 2*k for j in range(4))
        p(f"""
v_pk_mul_f32 {vr(c,2)}, {vr(c,2)}, s[38:39] op_sel_hi:[1,0]
v_pk_mul_f32 {vr(d,2)}, {vr(d,2)}, s[38:39] op_sel_hi:[1,0]
v_pk_fma_f32 {vr(a,2)}, {vr(a,2)}, s[38:39], {vr(c,2)} op_sel_hi:[1,0,1]
v_pk_fma_f32 {vr(b,2)}, {vr(b,2)}, s[38:39], {vr(c,2)} op_sel_hi:[1,0,1] neg_lo:[0,0,1] neg_hi:[0,0,1]
""")
    p(f"v_lshlrev_b32 v{T5}, 4, v0")
    for oblk, j in ((2, 1), (0, 0), (1, 3)):
        for k in range(8):
            p(f"v_cvt_pk_bf16_f32 v{32+8*oblk+k}, v{X+16*j+2*k}, v{X+16*j+2*k+1}")
        for u in range(2):
            p(f"ds_write_b128 v{T5}, {vr(32+8*oblk+4*u,4)} offset:{8192*oblk+4096*u}")
    p(f"""
v_and_b32 v{T0}, 1, v{T0}
v_lshl_add_u32 v{T4}, v{T3}, 3, v{T1}
v_lshlrev_b32 v{T4}, 6, v{T4}
v_and_b32 v{T5}, 1, v{T2}
v_lshl_add_u32 v{T4}, v{T5}, 5, v{T4}
v_lshrrev_b32 v{T2}, 1, v{T2}
v_lshl_add_u32 v{U}, v{T0}, 1, v{T2}
v_lshl_add_u32 v{U}, v{U}, 3, v{T4}
v_lshl_add_u32 v{T4}, v{T0}, 1, v{T5}
v_lshrrev_b32 v{T5}, 1, v{T1}
v_xor_b32 v{T4}, v{T4}, v{T5}
s_add_u32 s56, s21, {TGT}
v_lshl_add_u32 v{T4}, v{T4}, 4, s56
v_lshl_add_u32 v{T4}, v{T2}, 3, v{T4}
v_lshl_add_u32 v{T4}, v{T1}, 7, v{T4}
v_mad_u32_u24 v{U+1}, v{T3}, s55, v{T4}
v_bfe_u32 v{T0}, v{LANE}, 2, 1
v_bfe_u32 v{T1}, v{LANE}, 3, 1
v_and_b32 v{T2}, 3, v{LANE}
v_lshl_add_u32 v{T1}, v{T1}, 2, v{T2}
v_lshrrev_b32 v{T2}, 1, v{T2}
v_xor_b32 v{T2}, v{T2}, v{T3}
v_lshl_add_u32 v{T2}, v{T2}, 4, s56
v_lshl_add_u32 v{T2}, v{T1}, 7, v{T2}
v_mad_u32_u24 v{U+2}, v{T0}, s55, v{T2}
v_and_b32 v{EX}, 0x78, v{E}
v_lshl_add_u32 v{A1}, v{EX}, 1, v{K1}
s_waitcnt vmcnt({4*D}) lgkmcnt(0)
s_barrier
""")
    stamp()
    for s in range(4):
        p(f"ds_read_b128 {vr(H+4*s,4)}, v{U+2} offset:{32*s}")
    def wfrag(dst, blk):
        for u in range(2):
            for s in range(4):
                for y in range(2):
                    p(f"ds_read_b64_tr_b16 {ar(dst+16*u+4*s+2*y,2)}, v{U} offset:{8192*blk+4096*u+1024*s+256*y}")
    wfrag(WBC, 2)
    for v in range(2):
        for y in range(2):
            p(f"ds_read_b64_tr_b16 {ar(TT+4*v+2*y,2)}, v{U+1} offset:{512*y+64*v}")
    p(f"ds_read_b128 {vr(OH,4)}, v{A1}")
    for u in range(2):
        for s in range(4):
            c = "0" if s == 0 else vr(Z+16*u, 16)
            p(f"{M32} {vr(Z+16*u,16)}, {vr(H+4*s,4)}, {ar(WBC+16*u+4*s,4)}, {c}")
    wfrag(WA, 0)
    wfrag(WD, 1)
    for v in range(2):
        p(f"{M32} {vr(TE+16*v,16)}, {ar(TT+4*v,4)}, {vr(OH,4)}, 0")
    p(f"""
v_lshlrev_b32 v{B1}, 16, v{B1}
v_lshlrev_b32 v{B1+1}, 16, v{B1+1}
v_lshlrev_b32 v{B2}, 16, v{B2}
v_mov_b32 v{B2+1}, 0
v_mov_b32 v{B2+2}, 0
v_mov_b32 v{B2+3}, 0
""")
    for k in range(16):
        p(f"v_mov_b32 v{OUT+k}, 0")
    for u in range(2):
        for r in range(8):
            p(f"v_fmac_f32 v{Z+16*u+r}, s38, v{B1+u}")
        for k in range(4):
            p(f"v_cvt_pk_bf16_f32 v{CT+4*u+k}, v{Z+16*u+2*k}, v{Z+16*u+2*k+1}")
    p(f"{M32} {vr(Z,16)}, {vr(CT,4)}, {vr(OH,4)}, 0")
    p(f"v_add_u32 v{LA}, 128, v{LA}")
    p("s_waitcnt lgkmcnt(0)")
    stamp()

    def schain():
        return [f"v_mul_f32 v{S_}, v{SC}, v{MK}",
                f"v_cvt_pk_bf16_f32 v{S_}, v{S_}, v{S_}",
                f"ds_write_b16 v{AS}, v{S_}",
                f"ds_read_b128 {vr(SB,4)}, v{SA} offset:{SM}"]
    def trreads():
        return [f"ds_read_b64_tr_b16 {vr(HT+4*dt+2*y,2)}, v{TA} offset:{512*y+64*(dt>>1)+8*(dt&1)}" for dt in range(4) for y in range(2)]
    def finals():
        return [f"{M16} {vr(OUT+4*dt,4)}, {vr(HT+4*dt,4)}, {vr(SB,4)}, {vr(OUT+4*dt,4)}" for dt in range(4)]
    def main(u, kind, s):
        w, b = (WA, H) if kind == "h" else (WD, P)
        return f"{M32} {vr(Z+16*u,16)}, {ar(w+16*u+4*s,4)}, {vr(b+4*s,4)}, {vr(Z+16*u,16)}"
    def score(q):
        c = vr(B2, 4) if q == 0 else vr(SC, 4)
        return f"{M16} {vr(SC,4)}, {ar(W2+4*q,4)}, {vr(SG+4*q,4)}, {c}"

    p.seg("loop")
    p(".p2align 3\nL_loop:")
    p(f"s_waitcnt vmcnt({4*(D-1)})")
    for s in range(4):
        p(f"ds_read_b128 {vr(H+4*s,4)}, v{HA} offset:{32*s}")
    p(f"{M32} {vr(Z+16,16)}, {vr(CT+4,4)}, {vr(OH,4)}, 0")
    p(f"ds_read_b128 {vr(DE,4)}, v{LD}")
    p(f"""
s_add_u32 s50, s36, {SLOT}
s_cmp_eq_u32 s50, {R*SLOT}
s_cselect_b32 s50, 0, s50
s_sub_u32 s35, s50, s36
s_mov_b32 s36, s50
""")
    for x in schain(): p(x)
    p(f"""
ds_write_b16 v{AS}, v{ZERO}
v_add_u32 v{HA}, s35, v{HA}
v_lshl_add_u32 v{AS}, v{EX}, 1, v{KS}
v_and_b32 v{MK}, v{HIM}, v{E}
v_add_u32 v{LD}, 128, v{LD}
""")
    prod = []
    for s in range(4):
        for q in range(0, 4, 2):
            for qq in (q, q+1):
                prod += [f"v_lshlrev_b32 v{U+2*(qq&1)}, 16, v{H+4*s+qq}", f"v_and_b32 v{U+2*(qq&1)+1}, v{HIM}, v{H+4*s+qq}"]
            for qq in (q, q+1):
                prod += [f"v_mul_f32 v{U+2*(qq&1)}, v{U+2*(qq&1)}, v{TE+8*s+2*qq}", f"v_mul_f32 v{U+2*(qq&1)+1}, v{U+2*(qq&1)+1}, v{TE+8*s+2*qq+1}"]
            for qq in (q, q+1):
                prod += [f"v_cvt_pk_bf16_f32 v{P+4*s+qq}, v{U+2*(qq&1)}, v{U+2*(qq&1)+1}"]
    tr = trreads()
    dma = []
    for m in range(4):
        dma.append([f"v_and_or_b32 v{DA}, v{DE+m}, s22, v{CH}", f"buffer_load_dwordx4 v{DA}, s[24:27], 0 offen {hpol} lds", "s_addk_i32 m0, 1056"])
    order = [(0,"h",0),(0,"h",1),(0,"h",2),(0,"h",3),(0,"p",0),(1,"h",0),(1,"h",1),(0,"p",1),(1,"h",2),(1,"h",3),(1,"p",0),(0,"p",2),(1,"p",1)]
    ins = {}
    for k, o in enumerate(order):
        l = [main(*o)]
        if k < 8: l.append(tr[k])
        ins[6*k] = l
    body = weave(prod, ins)
    for x in body: p(x)
    p(main(1, "p", 2))
    p(f"v_add_u32 v{TA}, s37, v{TA}")
    p(main(0, "p", 3))
    p("s_mov_b32 s37, s35")
    for m in range(4):
        for x in dma[m]: p(x)
        if m == 1:
            p(main(1, "p", 3))
    p("s_cmp_eq_u32 m0, s33\ns_cselect_b32 m0, s34, m0")
    def sigmoid(u, ins_exp, ins_rcp):
        z = Z + 16*u
        a = [f"v_exp_f32 v{z+r}, v{z+r}" for r in range(16)]
        if pkadd:
            b = [f"v_pk_add_f32 {vr(z+2*k,2)}, {vr(z+2*k,2)}, 1.0 op_sel_hi:[1,0]" for k in range(8)]
        else:
            b = [f"v_add_f32 v{z+r}, 1.0, v{z+r}" for r in range(16)]
        c = []
        for k in range(8):
            c += [f"v_rcp_f32 v{z+2*k}, v{z+2*k}", f"v_rcp_f32 v{z+2*k+1}, v{z+2*k+1}"]
            if k > 0:
                c.append(f"v_cvt_pk_bf16_f32 v{SG+8*u+k-1}, v{z+2*k-2}, v{z+2*k-1}")
        c2 = weave(c, ins_rcp)
        c2.append(f"v_cvt_pk_bf16_f32 v{SG+8*u+7}, v{z+14}, v{z+15}")
        return weave(a, ins_exp) + b + c2
    fin = finals()
    for x in sigmoid(0, {2: [fin[0], f"ds_read_b32 v{E}, v{LA}"], 4: [fin[1]], 6: [fin[2]], 8: [fin[3]]},
                     {1: [f"v_and_b32 v{EX}, 0x78, v{E}", f"v_lshl_add_u32 v{A1}, v{EX}, 1, v{K1}", f"ds_read_b128 {vr(OH,4)}, v{A1}"],
                      17: [score(0)], 23: [f"v_add_u32 v{LA}, 128, v{LA}"]}):
        p(x)
    for x in sigmoid(1, {2: [score(1)], 3: [f"{M32} {vr(TE,16)}, {ar(TT,4)}, {vr(OH,4)}, 0", "s_sub_u32 s23, s23, 1"],
                         6: [f"{M32} {vr(TE+16,16)}, {ar(TT+4,4)}, {vr(OH,4)}, 0"]},
                     {2: [f"{M32} {vr(Z,16)}, {vr(CT,4)}, {vr(OH,4)}, 0"], 17: [score(2)], 23: ["s_cmp_lg_u32 s23, 0"]}):
        p(x)
    p(score(3))
    p("s_cbranch_scc1 L_loop")

    p.seg("epi")
    stamp()
    for x in trreads(): p(x)
    for x in schain(): p(x)
    for x in finals(): p(x)
    for k in range(8):
        p(f"v_cvt_pk_bf16_f32 v{H+k}, v{OUT+2*k}, v{OUT+2*k+1}")
    p(f"global_store_dwordx4 v{OA}, {vr(H,4)}, s[18:19] {spol}")
    p(f"global_store_dwordx4 v{OA}, {vr(H+4,4)}, s[18:19] offset:64 {spol}")
    if stamps:
        p("s_waitcnt vmcnt(0)")
        stamp()
    if probe:
        X, i, k = probe
        p(f"""
s_sub_u32 s50, s{60+2*i}, s60
s_mul_i32 s50, s50, {k}
s_add_u32 s50, s50, {X*100}
s_min_u32 s50, s50, 100000
L_probe:
s_memrealtime s[52:53]
s_waitcnt lgkmcnt(0)
s_sub_u32 s52, s52, s60
s_cmp_lt_u32 s52, s50
s_cbranch_scc1 L_probe
""")
    elif stamps:
        p("s_load_dwordx2 s[4:5], s[0:1], 72\ns_lshl_b32 s50, s20, 6\nv_mov_b32 v1, s50\ns_waitcnt lgkmcnt(0)")
        for i in range(nst[0]):
            p(f"v_mov_b32 v2, s{60+2*i}\nglobal_store_dword v1, v2, s[4:5] offset:{4*i}")
        p(f"v_mov_b32 v2, s57\nglobal_store_dword v1, v2, s[4:5] offset:60")
    p("L_end:")
    traces = [["pro", "loop", "epi"], ["pro", "loop", "loop", "loop", "epi"]]
    p.auto_lgkm(traces)
    p.check_vm(traces)
    p.fix_hazards(traces)
    sys.stderr.write("pro %s\nloop %s\nepi %s\n" % (p.stats("pro"), p.stats("loop"), p.stats("epi")))
    text = HDR + f"""; @launch grid=(256,1,1) block=(256,1,1) lds={LDS}
.amdgcn_target "amdgcn-amd-amdhsa--gfx950"
.text
.globl {NAME}
.p2align 8
.type {NAME},@function
{NAME}:
""" + p.emit() + f"""    s_endpgm
.section .rodata,"a"
.p2align 6
.amdhsa_kernel {NAME}
  .amdhsa_next_free_vgpr 384
  .amdhsa_next_free_sgpr 96
  .amdhsa_accum_offset 256
  .amdhsa_group_segment_fixed_size 0
  .amdhsa_kernarg_size 80
  .amdhsa_user_sgpr_count 2
  .amdhsa_user_sgpr_kernarg_segment_ptr 1
  .amdhsa_system_sgpr_workgroup_id_x 1
  .amdhsa_float_denorm_mode_32 3
.end_amdhsa_kernel
"""
    return text, LDS

if __name__ == "__main__":
    kw = eval("dict(%s)" % (sys.argv[2] if len(sys.argv) > 2 else ""))
    open(sys.argv[1], "w").write(gen(**kw)[0])
```

```python
import sys, struct
from asmlib import Prog, weave

NAME = "standalone__sequential_behavior_din__recsys_kernel"
HDR = open("standalone__sequential_behavior_din__recsys.s.ref").read().split("; Override")[0]

def f2u(x):
    return struct.unpack("<I", struct.pack("<f", x))[0]
def vr(b, n=1):
    return f"v{b}" if n == 1 else f"v[{b}:{b+n-1}]"
def ar(b, n=1):
    return f"a{b}" if n == 1 else f"a[{b}:{b+n-1}]"

def gen(D=3, D0=2, hpol="nt", spol="", tpol="nt", skip=True, stamps=False, probe=None, clk="s_memrealtime",
        wflip=True, cpf=False):
    if probe: stamps = True
    R = 4
    assert D <= 3 and D0 <= D
    SLOT = 4224
    TBL = 24576
    PB = TBL + 512
    WB0 = TBL + 1024
    LIST, TGT, SM, RING = 0, 2048, 4224, 5248
    WSZ = RING + R * SLOT
    LDS = WB0 + 4 * WSZ
    (LANE, CH, HA, TA, LA, LD, K1, KS, SA, E, EX, A1, AS, MK, S_, OA,
     T0, T1, T2, T3, T4, T5, FW, FT, FA, FB, F2, WL) = range(1, 29)
    H, P, TE, Z, SG, OUT, CT, SC, B2, DE, U = 32, 48, 64, 96, 128, 144, 160, 168, 172, 176, 180
    M_, LO, PO, WV, B1 = 192, 200, 208, 216, 220
    DE0 = 224
    WA, WD, W2, TT, WBC, HT, SB, OH = 0, 32, 64, 80, 96, 128, 160, 164
    M32 = "v_mfma_f32_32x32x16_bf16"
    M16 = "v_mfma_f32_16x16x32_bf16"
    SRD = [24, 28, 40, 44]
    MSK = 52
    p = Prog()
    nst = [0]
    def stamp(wait=True):
        if stamps:
            p(f"{clk} s[{70+2*nst[0]}:{71+2*nst[0]}]" + ("\ns_waitcnt lgkmcnt(0)" if wait else ""))
            nst[0] += 1

    p.seg("pro")
    stamp(False)
    p(f"""
s_load_dwordx16 s[4:19], s[0:1], 0
s_cmp_ge_u32 s2, 256
s_cbranch_scc1 L_end
v_lshrrev_b32 v{T0}, 6, v0
v_and_b32 v{LANE}, 63, v0
v_readfirstlane_b32 s3, v{T0}
s_lshl_b32 s20, s2, 2
s_mov_b32 s22, 0xff80
s_add_u32 s20, s20, s3
s_mul_i32 s50, s20, 640
v_lshl_add_u32 v{PO}, v{LANE}, 1, s50
s_mul_i32 s21, s3, {WSZ}
s_add_u32 s21, s21, {WB0}
v_bfe_u32 v{T3}, v{LANE}, 4, 1
v_and_b32 v{T4}, 7, v{LANE}
v_xor_b32 v{T3}, v{T3}, v{T4}
v_lshlrev_b32 v{CH}, 4, v{T3}
v_lshrrev_b32 v{T4}, 3, v{LANE}
v_lshl_add_u32 v{T5}, v{T4}, 7, v{CH}
s_lshl_b32 s51, s20, 11
v_add_u32 v{PO+1}, s51, v{T5}
v_lshl_add_u32 v{LD}, v{T4}, 4, s21
v_lshlrev_b32 v{PO+2}, 2, v{LANE}
v_lshrrev_b32 v{T1}, 2, v0
v_and_b32 v{T2}, 3, v0
v_lshlrev_b32 v{T3}, 4, v{T2}
v_lshl_add_u32 v{WV}, v{T1}, 7, v{T3}
v_add_u32 v{WV+1}, 0x2000, v{WV}
v_add_u32 v{WV+2}, 0x4000, v{WV}
v_add_u32 v{WV+3}, 0x6000, v{WV}
v_lshlrev_b32 v{WL}, 4, v0
s_add_u32 m0, s21, {TGT}
s_mul_i32 s48, s20, 40960
s_and_b32 s49, s3, 1
s_lshl_b32 s67, s49, 7
s_add_u32 s67, s67, {PB}
s_mov_b32 s33, 52429
s_movk_i32 s35, 1056
s_add_u32 s34, s21, {RING}
s_mov_b32 s36, 0xffff0000
s_mov_b32 s38, {hex(f2u(-1.4426950408889634))}
""")
    for m in range(4):
        p(f"s_mov_b32 s{SRD[m]+2}, {40960+1056*m}\ns_mov_b32 s{SRD[m]+3}, 0x20000")
    for q in range(5):
        p(f"""
v_add_u32 v{T0}, {64*q}, v{LANE}
v_mul_u32_u24 v{T1}, s33, v{T0}
v_lshrrev_b32 v{T1}, 20, v{T1}
v_lshlrev_b32 v{T1}, 3, v{T1}
v_lshl_or_b32 v{LO+q}, v{T0}, 7, v{T1}
""")
    p("s_cmp_eq_u32 s49, 0\ns_waitcnt lgkmcnt(0)")
    for q in range(5):
        p(f"global_load_ushort v{M_+q}, v{PO}, s[8:9] offset:{128*q}")
    stamp(False)
    p(f"""
global_load_lds_dwordx4 v{PO+1}, s[4:5] {tpol}
s_cselect_b32 s12, s12, s14
s_cselect_b32 s13, s13, s15
s_add_u32 m0, m0, 32
s_load_dword s37, s[16:17], 0
global_load_lds_dwordx4 v{PO+1}, s[4:5] offset:1024 {tpol}
s_mov_b32 m0, s67
s_mov_b32 exec_hi, 0
global_load_lds_dword v{PO+2}, s[12:13]
s_mov_b32 exec_hi, -1
""")
    def wloads(order):
        for blk in order:
            for u in range(2):
                p(f"global_load_dwordx4 {vr(32+8*blk+4*u,4)}, v{WV+blk}, s[10:11] offset:{64*u}")
    if wflip:
        p("s_bitcmp1_b32 s2, 3\ns_cbranch_scc1 L_wrev")
        wloads((0, 1, 2, 3))
        p("s_branch L_wdone")
        p.seg("wrev")
        p("L_wrev:")
        wloads((3, 2, 1, 0))
        p.seg("pro2")
        p("L_wdone:")
    else:
        wloads((0, 1, 2, 3))
        p.seg("wrev")
        p.seg("pro2")
    p(f"s_add_u32 s{SRD[0]}, s6, s48\ns_addc_u32 s{SRD[0]+1}, s7, 0")
    for m in range(1, 4):
        p(f"s_sub_u32 s{SRD[m]}, s{SRD[0]}, {1056*m}\ns_subb_u32 s{SRD[m]+1}, s{SRD[0]+1}, 0")
    p(f"""
v_mov_b32 v{Z}, s22
v_mov_b32 v{Z+1}, s22
v_mov_b32 v{Z+2}, s22
v_mov_b32 v{Z+3}, s22
v_lshl_add_u32 v{SA}, v{LANE}, 4, s21
ds_write_b128 v{SA}, {vr(Z,4)} offset:{LIST}
ds_write_b128 v{SA}, {vr(Z,4)} offset:{LIST+1024}
v_mov_b32 v{SC}, 0
v_mov_b32 v{SC+1}, 0
v_mov_b32 v{SC+2}, 0
v_mov_b32 v{SC+3}, 0
ds_write_b128 v{SA}, {vr(SC,4)} offset:{SM}
v_lshrrev_b32 v{T1}, 2, v{LANE}
v_lshlrev_b32 v{T2}, 1, v{T2}
v_sub_u32 v{T1}, v{T1}, v{T2}
v_mov_b32 v{T3}, 0x3f80
v_mov_b32 v{T4}, 0x3f800000
v_cmp_eq_u32 vcc, 8, v{T1}
v_cmp_eq_u32_e64 s[68:69], 9, v{T1}
v_mov_b32 v{MK}, 0
v_cndmask_b32 v{T2}, v{SC}, v{T3}, vcc
v_cndmask_b32_e64 v{T2}, v{T2}, v{T4}, s[68:69]
ds_write2st64_b32 v{PO+2}, v{T2}, v{SC} offset0:{TBL//256} offset1:{TBL//256+1}
""")
    p(f"""
v_bfe_u32 v{T0}, v{LANE}, 3, 2
v_lshrrev_b32 v{T1}, 1, v{T0}
v_xor_b32 v{T1}, v{T1}, v{T0}
v_and_b32 v{T1}, 1, v{T1}
v_lshlrev_b32 v{T1}, 2, v{T1}
v_and_b32 v{T2}, 7, v{LANE}
v_xor_b32 v{T1}, v{T1}, v{T2}
v_lshrrev_b32 v{T2}, 5, v{LANE}
v_bfe_u32 v{T3}, v{T1}, 1, 1
v_xor_b32 v{T3}, v{T3}, v{T2}
v_lshl_add_u32 v{T3}, v{T3}, 4, s34
v_lshl_add_u32 v{T3}, v{T1}, 7, v{T3}
v_mad_u32_u24 v{HA}, v{T0}, s35, v{T3}
v_lshl_add_u32 v{T3}, v{T1}, 2, v{T0}
v_lshl_add_u32 v{LA}, v{T3}, 2, s21
v_lshlrev_b32 v{T3}, 7, v{T2}
v_sub_u32 v{K1}, {TBL+128}, v{T3}
v_and_b32 v{T3}, 4, v{T1}
v_add_u32 v{T3}, v{T3}, v{T0}
v_and_b32 v{T4}, 3, v{T1}
s_add_u32 s68, s21, {SM}
v_lshl_add_u32 v{T4}, v{T4}, 8, s68
v_lshl_add_u32 v{KS}, v{T3}, 1, v{T4}
v_mov_b32 v{AS}, v{KS}
""")
    p(f"""
v_lshrrev_b32 v{T0}, 4, v{LANE}
v_bfe_u32 v{T1}, v{LANE}, 2, 2
v_and_b32 v{T2}, 3, v{LANE}
v_lshrrev_b32 v{T3}, 5, v{LANE}
v_xor_b32 v{T4}, v{T2}, v{T3}
v_lshl_add_u32 v{T4}, v{T4}, 4, s34
v_lshl_add_u32 v{T4}, v{T0}, 7, v{T4}
v_mad_u32_u24 v{TA}, v{T1}, s35, v{T4}
v_and_b32 v{T4}, 15, v{LANE}
v_lshlrev_b32 v{T4}, 7, v{T4}
v_lshl_add_u32 v{T4}, v{T0}, 4, v{T4}
v_add_u32 v{OA}, s51, v{T4}
v_and_b32 v{T0}, 1, v{T0}
v_lshl_add_u32 v{T4}, v{T3}, 3, v{T1}
v_lshlrev_b32 v{T4}, 6, v{T4}
v_and_b32 v{T5}, 1, v{T2}
v_lshl_add_u32 v{T4}, v{T5}, 5, v{T4}
v_lshrrev_b32 v{T2}, 1, v{T2}
v_lshl_add_u32 v{FW}, v{T0}, 1, v{T2}
v_lshl_add_u32 v{FW}, v{FW}, 3, v{T4}
v_lshl_add_u32 v{T4}, v{T0}, 1, v{T5}
v_lshrrev_b32 v{T5}, 1, v{T1}
v_xor_b32 v{T4}, v{T4}, v{T5}
s_add_u32 s68, s21, {TGT}
v_lshl_add_u32 v{T4}, v{T4}, 4, s68
v_lshl_add_u32 v{T4}, v{T2}, 3, v{T4}
v_lshl_add_u32 v{T4}, v{T1}, 7, v{T4}
v_mad_u32_u24 v{FT}, v{T3}, s35, v{T4}
v_and_b32 v{T4}, 1, v{T1}
v_xor_b32 v{T0}, v{T0}, v{T4}
v_lshlrev_b32 v{F2}, 5, v{T3}
v_add_u32 v{F2}, {PB+128}, v{F2}
v_cmp_eq_u32 vcc, 0, v{T0}
v_mov_b32 v{T0}, {TBL}
v_and_b32 v{T2}, 3, v{LANE}
v_cndmask_b32 v{F2}, v{T0}, v{F2}, vcc
v_lshl_add_u32 v{T0}, v{T5}, 2, v{T2}
v_lshrrev_b32 v{T1}, 1, v{T2}
v_xor_b32 v{T1}, v{T1}, v{T3}
v_lshl_add_u32 v{T1}, v{T1}, 4, s68
v_lshl_add_u32 v{T1}, v{T0}, 7, v{T1}
v_mad_u32_u24 v{FA}, v{T4}, s35, v{T1}
v_bfe_u32 v{T0}, v{LANE}, 3, 2
v_lshl_add_u32 v{T0}, v{T0}, 2, v{T2}
v_lshl_add_u32 v{T0}, v{T4}, 4, v{T0}
v_lshlrev_b32 v{FB}, 1, v{T0}
s_lshr_b32 s32, s21, 2
s_add_u32 s32, s32, 320
""")
    stamp(False)
    p("s_waitcnt vmcnt(11) lgkmcnt(0)")
    stamp(False)
    for q in range(5):
        if skip:
            p(f"v_cmp_ne_u32_e64 s[{MSK+2*q}:{MSK+1+2*q}], 0, v{M_+q}")
        else:
            p(f"s_mov_b64 s[{MSK+2*q}:{MSK+1+2*q}], -1")
    for q in range(5):
        p(f"v_mbcnt_lo_u32_b32 v{PO+q}, s{MSK+2*q}, 0\ns_bcnt1_i32_b64 s{62+q}, s[{MSK+2*q}:{MSK+1+2*q}]")
    p("s_sub_u32 s66, s32, s66")
    for q in range(5):
        p(f"v_mbcnt_hi_u32_b32 v{PO+q}, s{MSK+1+2*q}, v{PO+q}")
        if q < 4:
            p(f"s_sub_u32 s{65-q}, s{66-q}, s{65-q}")
    for q in range(5):
        p(f"v_lshl_or_b32 v{LO+q}, v{M_+q}, 16, v{LO+q}\nv_add_lshl_u32 v{PO+q}, v{PO+q}, s{62+q}, 2")
    p("s_sub_u32 s23, s62, s32\ns_add_u32 s23, s23, 320\ns_lshr_b32 s23, s23, 5\ns_min_u32 s23, s23, 9\ns_lshl_b32 s49, s23, 7")
    p(f"v_add_u32 v{T0}, s49, v{LD}")
    for q in range(5):
        p(f"s_mov_b64 exec, s[{MSK+2*q}:{MSK+1+2*q}]\nds_write_b32 v{PO+q}, v{LO+q}")
    p("s_mov_b64 exec, -1")
    if stamps: p("s_waitcnt lgkmcnt(0)")
    for t in range(D):
        p(f"ds_read_b128 {vr(DE0+4*t,4)}, v{T0} offset:{128*t}")
    p(f"""
v_add_u32 v{T1}, s49, v{LA}
ds_read_b32 v{E}, v{T1}
s_and_b32 s50, s23, 3
s_mul_i32 s39, s50, {SLOT}
s_add_u32 m0, s34, s39
""")
    def dma_pro(t):
        if t > 0:
            p(f"s_add_u32 s50, s23, {t}\ns_and_b32 s50, s50, 3\ns_mul_i32 s50, s50, {SLOT}\ns_add_u32 m0, s34, s50")
        for m in range(4):
            p(f"v_and_or_b32 v{DE0+4*t+m}, v{DE0+4*t+m}, s22, v{CH}")
            p(f"buffer_load_dwordx4 v{DE0+4*t+m}, s[{SRD[m]}:{SRD[m]+3}], 0 offen offset:{1056*m} {hpol} lds")
    for t in range(D0):
        dma_pro(t)
    stamp()
    p(f"""
v_and_b32 v{EX}, 0x78, v{E}
v_lshl_add_u32 v{A1}, v{EX}, 1, v{K1}
ds_read_b128 {ar(OH,4)}, v{A1}
s_waitcnt vmcnt({4*D0})
""")
    stamp()
    for v in range(2):
        for y in range(2):
            p(f"ds_read_b64_tr_b16 {ar(TT+4*v+2*y,2)}, v{FT} offset:{512*y+64*v}")
    X = 96
    TFR = 160
    TFR = 240
    for s in range(4):
        p(f"ds_read_b128 {vr(TFR+4*s,4)}, v{FA} offset:{32*s}")
    def unpack(blk):
        for k in range(8):
            p(f"v_lshlrev_b32 v{X+16*blk+2*k}, 16, v{32+8*blk+k}\nv_and_b32 v{X+16*blk+2*k+1}, s36, v{32+8*blk+k}")
    def pack(oblk, j):
        for u in range(2):
            for k in range(4*u, 4*u+4):
                p(f"v_cvt_pk_bf16_f32 v{32+8*j+k}, v{X+16*j+2*k}, v{X+16*j+2*k+1}")
            p(f"ds_write_b128 v{WL}, {vr(32+8*j+4*u,4)} offset:{8192*oblk+4096*u}")
    unpack(3)
    for k in range(8):
        d = X + 48 + 2*k
        p(f"v_pk_mul_f32 {vr(d,2)}, {vr(d,2)}, s[38:39] op_sel_hi:[1,0]")
    pack(1, 3)
    unpack(2)
    unpack(1)
    for k in range(8):
        c = X + 32 + 2*k
        p(f"v_pk_mul_f32 {vr(c,2)}, {vr(c,2)}, s[38:39] op_sel_hi:[1,0]")
    for k in range(8):
        b, c = X + 16 + 2*k, X + 32 + 2*k
        p(f"v_pk_fma_f32 {vr(b,2)}, {vr(b,2)}, s[38:39], {vr(c,2)} op_sel_hi:[1,0,1] neg_lo:[0,0,1] neg_hi:[0,0,1]")
    pack(2, 1)
    unpack(0)
    for k in range(8):
        a, c = X + 2*k, X + 32 + 2*k
        p(f"v_pk_fma_f32 {vr(a,2)}, {vr(a,2)}, s[38:39], {vr(c,2)} op_sel_hi:[1,0,1]")
    pack(0, 0)
    for v in range(2):
        p(f"{M32} {vr(TE+16*v,16)}, {ar(TT+4*v,4)}, {ar(OH,4)}, 0")
    p(f"s_lshl_b32 s37, s37, 16\nv_mov_b32 v{B2}, s37")
    p("s_waitcnt lgkmcnt(0)\ns_barrier")
    stamp()
    def wfrag(dst, blk, u):
        return [f"ds_read_b64_tr_b16 {ar(dst+16*u+4*s+2*y,2)}, v{FW} offset:{8192*blk+4096*u+1024*s+256*y}" for s in range(4) for y in range(2)]
    for x in wfrag(WBC, 2, 0) + [f"ds_read_u16 v{B1}, v{FB} offset:{PB}", f"ds_read_u16 v{B1+1}, v{FB} offset:{PB+64}"] + wfrag(WBC, 2, 1):
        p(x)
    rest = wfrag(WA, 0, 0) + wfrag(WD, 1, 0) + wfrag(WA, 0, 1) + wfrag(WD, 1, 1)
    rest += [f"ds_read_b128 {ar(W2+4*q,4)}, v{F2} offset:{64*(q>>1)+16*(q&1)}" for q in range(4)]
    k = 0
    for u in range(2):
        for s in range(4):
            c = "0" if s == 0 else vr(Z+16*u, 16)
            p(f"{M32} {vr(Z+16*u,16)}, {vr(TFR+4*s,4)}, {ar(WBC+16*u+4*s,4)}, {c}")
            for x in rest[k:k+4]: p(x)
            k += 4
    for x in rest[k:]: p(x)
    p(f"v_lshlrev_b32 v{B1}, 16, v{B1}\nv_lshlrev_b32 v{B1+1}, 16, v{B1+1}")
    for u in range(2):
        for r in range(8):
            p(f"v_fmac_f32 v{Z+16*u+r}, s38, v{B1+u}")
        for k in range(4):
            p(f"v_cvt_pk_bf16_f32 v{CT+4*u+k}, v{Z+16*u+2*k}, v{Z+16*u+2*k+1}")
    p(f"v_add_u32 v{T0}, s39, v{HA}")
    p(f"{M32} {vr(Z,16)}, {vr(CT,4)}, {ar(OH,4)}, 0")
    for t in range(D0, D):
        dma_pro(t)
    for k in range(1, 4):
        p(f"v_mov_b32 v{B2+k}, 0")
    for k in range(16):
        p(f"v_mov_b32 v{OUT+k}, 0")
    for k in range(32):
        p(f"v_accvgpr_write_b32 a{HT+k}, 0")
    stamp()
    p(f"s_waitcnt vmcnt({4*(D-1)})")
    stamp()
    for s in range(4):
        p(f"ds_read_b128 {vr(H+4*s,4)}, v{T0} offset:{32*s}")
    for pos in (5, 4, 3, 6, 7, 8, 9, 2, 1):
        p(f"s_cmp_eq_u32 s23, {pos}\ns_cbranch_scc1 L_p{pos}")

    def main(u, kind, s):
        w, b = (WA, H) if kind == "h" else (WD, P)
        return f"{M32} {vr(Z+16*u,16)}, {ar(w+16*u+4*s,4)}, {vr(b+4*s,4)}, {vr(Z+16*u,16)}"
    def score(q):
        c = vr(B2, 4) if q == 0 else vr(SC, 4)
        return f"{M16} {vr(SC,4)}, {ar(W2+4*q,4)}, {vr(SG+4*q,4)}, {c}"
    def finals(pos):
        ht = HT + 16 * (pos & 1)
        return [f"{M16} {vr(OUT+4*dt,4)}, {ar(ht+4*dt,4)}, {ar(SB,4)}, {vr(OUT+4*dt,4)}" for dt in range(4)]
    smul = [f"v_mul_f32 v{S_}, v{SC}, v{MK}", f"v_cvt_pk_bf16_f32 v{S_}, v{S_}, v{S_}"]
    sw = f"ds_write_b16 v{AS}, v{S_}"
    sr = f"ds_read_b128 {ar(SB,4)}, v{SA} offset:{SM}"
    su = f"ds_write_b16 v{AS}, v{MK}"
    prod = []
    for s in range(4):
        for q in range(0, 4, 2):
            for qq in (q, q+1):
                prod += [f"v_lshlrev_b32 v{U+2*(qq&1)}, 16, v{H+4*s+qq}", f"v_and_b32 v{U+2*(qq&1)+1}, s36, v{H+4*s+qq}"]
            for qq in (q, q+1):
                prod += [f"v_mul_f32 v{U+2*(qq&1)}, v{U+2*(qq&1)}, v{TE+8*s+2*qq}", f"v_mul_f32 v{U+2*(qq&1)+1}, v{U+2*(qq&1)+1}, v{TE+8*s+2*qq+1}"]
            for qq in (q, q+1):
                prod += [f"v_cvt_pk_bf16_f32 v{P+4*s+qq}, v{U+2*(qq&1)}, v{U+2*(qq&1)+1}"]
    def sigmoid(u, ins_exp, ins_rcp):
        z = Z + 16*u
        a = [f"v_exp_f32 v{z+r}, v{z+r}" for r in range(16)]
        b = [f"v_pk_add_f32 {vr(z+2*k,2)}, {vr(z+2*k,2)}, 1.0 op_sel_hi:[1,0]" for k in range(8)]
        c = []
        for k in range(8):
            c += [f"v_rcp_f32 v{z+2*k}, v{z+2*k}", f"v_rcp_f32 v{z+2*k+1}, v{z+2*k+1}"]
            if k > 0:
                c.append(f"v_cvt_pk_bf16_f32 v{SG+8*u+k-1}, v{z+2*k-2}, v{z+2*k-1}")
        c.append(f"v_cvt_pk_bf16_f32 v{SG+8*u+7}, v{z+14}, v{z+15}")
        return weave(a, ins_exp) + b + weave(c, ins_rcp)

    for pos in range(10):
        p.seg(f"p{pos}")
        p(f"L_p{pos}:")
        nxt = pos < 9
        iss = pos + D <= 9
        so = (pos % R) * SLOT
        ht = HT + 16 * (pos & 1)
        tr = [f"ds_read_b64_tr_b16 {ar(ht+4*dt+2*y,2)}, v{TA} offset:{so+512*y+64*(dt>>1)+8*(dt&1)}" for dt in range(4) for y in range(2)]
        erd = [f"ds_read_b32 v{E}, v{LA} offset:{128*(pos+1)}"] if nxt else []
        derd = [f"ds_read_b128 {vr(DE,4)}, v{LD} offset:{128*(pos+D)}"] if iss else []
        ohrd = [f"ds_read_b128 {ar(OH,4)}, v{A1}"] if nxt else []
        exa = [f"v_and_b32 v{EX}, 0x78, v{E}", f"v_lshl_add_u32 v{A1}, v{EX}, 1, v{K1}"] if nxt else []
        ins = {
            0: [main(0,"h",0), tr[0]],
            6: [main(0,"h",1), "s_waitcnt lgkmcnt(1)"],
            9: smul,
            11: [main(0,"h",2), sw],
            17: [main(0,"h",3), sr],
            23: [main(0,"p",0), su],
            25: [f"v_lshl_add_u32 v{AS}, v{EX}, 1, v{KS}", f"v_and_b32 v{MK}, s36, v{E}"],
            28: [f"{M32} {vr(Z+16,16)}, {vr(CT+4,4)}, {ar(OH,4)}, 0"] + erd,
            34: [main(1,"h",0), tr[1]],
            42: [main(0,"p",1), tr[2]],
            48: [main(1,"h",1)] + (["s_waitcnt lgkmcnt(2)"] if nxt else []),
            50: exa,
            53: [main(1,"h",2)] + ohrd,
            62: [main(0,"p",2)] + (derd if iss else [tr[3]]),
            68: [main(1,"h",3)] + ([tr[3]] if iss else []),
            74: [main(1,"p",0)] + ([f"s_add_u32 m0, s34, {((pos+D)%R)*SLOT}"] if iss else []),
        }
        for x in weave(prod, ins): p(x)
        if iss:
            p(f"v_and_or_b32 v{DE}, v{DE}, s22, v{CH}")
            p(f"v_and_or_b32 v{DE+1}, v{DE+1}, s22, v{CH}")
            p(main(0,"p",3))
            for m in range(4):
                if m >= 2:
                    p(f"v_and_or_b32 v{DE+m}, v{DE+m}, s22, v{CH}")
                p(f"buffer_load_dwordx4 v{DE+m}, s[{SRD[m]}:{SRD[m]+3}], 0 offen offset:{1056*m} {hpol} lds")
            p(tr[4])
            x0 = {0: [main(1,"p",1), tr[5]], 3: [main(1,"p",2), tr[6]], 6: [main(1,"p",3), tr[7]]}
        else:
            p(tr[4])
            p(main(0,"p",3))
            for x in tr[5:8]: p(x)
            x0 = {0: [main(1,"p",1)], 3: [main(1,"p",2)], 6: [main(1,"p",3)]}
        fin = finals(pos - 1)
        for x in sigmoid(0, x0, {0: [fin[0]], 2: [fin[1]], 5: [fin[2]], 8: [fin[3]], 17: [score(0)]}):
            p(x)
        if nxt:
            sn = ((pos + 1) % R) * SLOT
            hr = [f"ds_read_b128 {vr(H+4*s,4)}, v{HA} offset:{sn+32*s}" for s in range(4)]
            nout = 4 * max(0, min(pos + D, 9) - (pos + 1))
            r1 = {0: [f"s_waitcnt vmcnt({nout})", f"{M32} {vr(TE,16)}, {ar(TT,4)}, {ar(OH,4)}, 0", hr[0]],
                  4: [f"{M32} {vr(TE+16,16)}, {ar(TT+4,4)}, {ar(OH,4)}, 0", hr[1]],
                  9: [f"{M32} {vr(Z,16)}, {vr(CT,4)}, {ar(OH,4)}, 0", hr[2]],
                  16: [score(2), hr[3]]}
        else:
            r1 = {16: [score(2)]}
        for x in sigmoid(1, {2: [score(1)]}, r1):
            p(x)
        p(score(3))

    p.seg("epi")
    stamp()
    for x in smul + [sw, sr] + finals(9): p(x)
    for k in range(8):
        p(f"v_cvt_pk_bf16_f32 v{H+k}, v{OUT+2*k}, v{OUT+2*k+1}")
        if k == 3:
            p(f"global_store_dwordx4 v{OA}, {vr(H,4)}, s[18:19] {spol}")
    p(f"global_store_dwordx4 v{OA}, {vr(H+4,4)}, s[18:19] offset:64 {spol}")
    if stamps:
        p("s_waitcnt vmcnt(0)")
        stamp()
    if probe:
        X_, i, k = probe
        p(f"""
s_sub_u32 s50, s{70+2*i}, s70
s_mul_i32 s50, s50, {k}
s_add_u32 s50, s50, {X_*100}
s_min_u32 s50, s50, 100000
L_probe:
s_memrealtime s[52:53]
s_waitcnt lgkmcnt(0)
s_sub_u32 s52, s52, s70
s_cmp_lt_u32 s52, s50
s_cbranch_scc1 L_probe
""")
    elif stamps:
        p("s_load_dwordx2 s[4:5], s[0:1], 72\ns_lshl_b32 s50, s20, 6\nv_mov_b32 v1, s50\ns_waitcnt lgkmcnt(0)")
        for i in range(nst[0]):
            p(f"v_mov_b32 v2, s{70+2*i}\nglobal_store_dword v1, v2, s[4:5] offset:{4*i}")
        p(f"s_sub_u32 s23, 10, s23\ns_lshl_b32 s23, s23, 5\nv_mov_b32 v2, s23\nglobal_store_dword v1, v2, s[4:5] offset:60")
    p("L_end:")
    traces = [["pro", "pro2"] + [f"p{q}" for q in range(s, 10)] + ["epi"] for s in range(10)]
    p.auto_lgkm(traces)
    p.check_vm(traces)
    p.fix_hazards(traces)
    for n in ("pro", "pro2", "p5", "p8", "p9", "epi"):
        sys.stderr.write("%s %s\n" % (n, p.stats(n)))
    sys.stderr.write(f"stamps {nst[0]} lds {LDS}\n")
    text = HDR + f"""; @launch grid=(256,1,1) block=(256,1,1) lds={LDS}
.amdgcn_target "amdgcn-amd-amdhsa--gfx950"
.text
.globl {NAME}
.p2align 8
.type {NAME},@function
{NAME}:
""" + p.emit() + f"""    s_endpgm
.section .rodata,"a"
.p2align 6
.amdhsa_kernel {NAME}
  .amdhsa_next_free_vgpr 424
  .amdhsa_next_free_sgpr 100
  .amdhsa_accum_offset 256
  .amdhsa_group_segment_fixed_size 0
  .amdhsa_kernarg_size 80
  .amdhsa_user_sgpr_count 2
  .amdhsa_user_sgpr_kernarg_segment_ptr 1
  .amdhsa_system_sgpr_workgroup_id_x 1
  .amdhsa_float_denorm_mode_32 3
.end_amdhsa_kernel
"""
    return text, LDS

if __name__ == "__main__":
    kw = eval("dict(%s)" % (sys.argv[2] if len(sys.argv) > 2 else ""))
    open(sys.argv[1], "w").write(gen(**kw)[0])
```
